```python
import torch

def _softmax(x, axis=-1):
    return torch.softmax(x, dim=axis)
def _gelu(x):
    return torch.nn.functional.gelu(x, approximate="tanh")
def _silu(x):
    return torch.nn.functional.silu(x)
def _sigmoid(x):
    return torch.sigmoid(x)
def _layernorm(x, axis=-1, eps=1e-5):
    m = x.mean(dim=axis, keepdim=True)
    v = x.var(dim=axis, keepdim=True, unbiased=False)
    return (x - m) / torch.sqrt(v + eps)
def _scatter_add(tgt, idx, src, axis=0):
    return tgt.clone().index_add_(axis, idx, src)
def _segment_sum(src, seg, n):
    out = torch.zeros((n,) + src.shape[1:], dtype=src.dtype)
    return out.index_add_(0, seg, src)
def _pad(x, pw):
    flat = tuple(v for pair in reversed(pw) for v in pair)
    return torch.nn.functional.pad(x, flat)

kernel_name = 'parallel_sum__compressed_kv_cla__geglu_ffn__prompt'

def setup_inputs():

    _w = (lambda a: (lambda t: t.to(torch.bfloat16) if t.is_floating_point() else t)(torch.as_tensor(a)))
    def _A_setup():
        B, H, Sq, Sk, D, M = 1, 32, 2048, 2048, 128, 640
        Dc = 4 * D
        return {
            "x": _w((lambda *s: torch.randn(*s, dtype=torch.bfloat16) * 0.05)(B, Sq, M)),
            "c_kv": _w((lambda *s: torch.randn(*s, dtype=torch.bfloat16) * 1.6)(B, Sk, Dc)),
            "w_q": _w((lambda *s: torch.randn(*s, dtype=torch.bfloat16) * 0.8)(M, H, D) * (M ** -0.5)),
            "w_uk": _w((lambda *s: torch.randn(*s, dtype=torch.bfloat16) * 0.8)(Dc, H, D) * (Dc ** -0.5)),
            "w_uv": _w((lambda *s: torch.randn(*s, dtype=torch.bfloat16) * 1.6)(Dc, H, D) * (Dc ** -0.5)),
            "w_o": _w((lambda *s: torch.randn(*s, dtype=torch.bfloat16) * 1.6)(H, D, M) * ((H * D) ** -0.5)),
        }
    _A_in = _A_setup()

    def _B_setup():
        B, S, D, F = 1, 2048, 640, 1728
        return {
            "x": _w((lambda *s: torch.randn(*s, dtype=torch.bfloat16) * 0.05)(B, S, D)),
            "w_gate": _w((lambda *s: torch.randn(*s, dtype=torch.bfloat16) * 0.05)(D, F)),
            "w_up": _w((lambda *s: torch.randn(*s, dtype=torch.bfloat16) * 0.05)(D, F)),
            "w_down": _w((lambda *s: torch.randn(*s, dtype=torch.bfloat16) * 0.05)(F, D)),
        }
    _B_in = _B_setup()

    return {
        "A_x": _A_in["x"],
        "A_c_kv": _A_in["c_kv"],
        "A_w_q": _A_in["w_q"],
        "A_w_uk": _A_in["w_uk"],
        "A_w_uv": _A_in["w_uv"],
        "A_w_o": _A_in["w_o"],
        "B_x": _B_in["x"],
        "B_w_gate": _B_in["w_gate"],
        "B_w_up": _B_in["w_up"],
        "B_w_down": _B_in["w_down"],
    }

def reference(A_x, A_c_kv, A_w_q, A_w_uk, A_w_uv, A_w_o, B_x, B_w_gate, B_w_up, B_w_down):
    def _A_ref(x, c_kv, w_q, w_uk, w_uv, w_o):
        B, Sq, M = x.shape[0], x.shape[1], x.shape[2]
        Sk = c_kv.shape[1]
        H, D = w_q.shape[1], w_q.shape[2]
        q = torch.einsum("bqm,mhd->bhqd", x, w_q)
        k = torch.einsum("bkc,chd->bhkd", c_kv, w_uk)
        v = torch.einsum("bkc,chd->bhkd", c_kv, w_uv)
        scores = torch.einsum("bhqd,bhkd->bhqk", q, k) * (D ** -0.5)
        off = Sk - Sq
        qi = torch.arange(Sq)[:, None]
        kj = torch.arange(Sk)[None, :]
        cmask = kj <= (qi + off)
        scores = torch.where(cmask[None, None], scores, -1e9)
        p = _softmax(scores, axis=-1)
        ctx = torch.einsum("bhqk,bhkd->bhqd", p, v)
        return torch.einsum("bhqd,hdm->bqm", ctx, w_o)

    def _B_ref(x, w_gate, w_up, w_down):
        return (_gelu(x @ w_gate) * (x @ w_up)) @ w_down

    x = A_x
    xn = _layernorm(x, axis=-1)
    return x + _A_ref(xn, A_c_kv, A_w_q, A_w_uk, A_w_uv, A_w_o) + _B_ref(xn, B_w_gate, B_w_up, B_w_down)
```

```python
import re, struct

def f2u(x):
    return struct.unpack("<I", struct.pack("<f", x))[0]

def vr(b, n=1, p="v"):
    return f"{p}{b}" if n == 1 else f"{p}[{b}:{b+n-1}]"
def ar(b, n=1): return vr(b, n, "a")
def sr(b, n=1): return vr(b, n, "s")

class Reg:
    def __init__(s, k, b, n=4): s.k, s.b, s.n = k, b, n
    def __str__(s): return vr(s.b, s.n, s.k)
    def sub(s, o, n=1): return Reg(s.k, s.b + o, n)
    def regs(s): return {(s.k, s.b + i) for i in range(s.n)}

MF = "v_mfma_f32_16x16x32_bf16"
def mfma(d, a, b, c=None):
    return f"{MF} {d}, {a}, {b}, {d if c is None else c}"

_rng = re.compile(r"\b([vas])\[(\d+):(\d+)\]|\b([vas])(\d+)\b")
def regs_in(txt):
    out = []
    for m in _rng.finditer(txt):
        if m.group(1): out.append({(m.group(1), i) for i in range(int(m.group(2)), int(m.group(3)) + 1)})
        else: out.append({(m.group(4), int(m.group(5)))})
    return out

class Asm:
    def __init__(s): s.L = []
    def __call__(s, *t):
        for x in t: s.L.append(x)
    def ext(s, l): s.L.extend(l)
    def label(s, n): s.L.append(n + ":")
    def text(s): return "\n".join(("    " + x if not (x.endswith(":") or x.startswith(".") or x.startswith(";")) else x) for x in s.L) + "\n"

class Sched:
    def __init__(s, mf):
        s.mf = list(mf); n = len(mf)
        s.S = [[] for _ in range(n)]; s.M = [[] for _ in range(n)]; s.V = [[] for _ in range(n)]; s.T = [[] for _ in range(n)]
    def s(s, g, *t): s.S[g].extend(t)
    def m(s, g, *t): s.M[g].extend(t)
    def v(s, g, *t): s.V[g].extend(t)
    def t(s, g, *t): s.T[g].extend(t)
    def ds_list(s):
        out = []
        for g in range(len(s.mf)):
            for x in s.M[g]:
                if x.startswith("ds_"): out.append((g, x))
        return out
    def add_lgkm_waits(s, prev_ds):
        q = [regs_in(x)[0] if x.startswith("ds_read") else set() for x in prev_ds]
        done = 0
        first = None
        n = len(s.mf)
        for g in range(-1, n - 1):
            use = set().union(*regs_in(s.mf[g + 1]))
            explicit = [x for x in (s.S[g] if g >= 0 else []) if "lgkmcnt" in x]
            for x in explicit:
                c = int(re.search(r"lgkmcnt\((\d+)\)", x).group(1)); done = max(done, len(q) - c)
            need = -1
            for i in range(done, len(q)):
                if q[i] & use: need = i
            if need >= 0:
                c = min(len(q) - 1 - need, 15)
                done = len(q) - c
                w = f"s_waitcnt lgkmcnt({c})"
                if g < 0: first = w
                else: s.S[g].insert(0, w)
            if g >= 0:
                for x in s.M[g]:
                    if x.startswith("ds_"):
                        d = regs_in(x)[0] if x.startswith("ds_read") else set()
                        assert not (d & use), f"ds read in gap {g} feeds next MFMA directly: {x}"
                        q.append(d)
        return first
    def emit(s, A, lo=0, hi=None):
        for g in range(lo, len(s.mf) if hi is None else hi):
            A(s.mf[g]); A.ext(s.S[g]); A.ext(s.M[g]); A.ext(s.V[g]); A.ext(s.T[g])

def cost(x):
    if x.startswith("buffer_") or x.startswith("global_"): return 2
    if x.startswith(("v_exp", "v_rcp", "v_rsq", "v_sqrt", "v_log")): return 2
    return 1

def fill(sc, items, start=0, cap=2):
    G = len(sc.mf); cur = start; post = []; prevk = None
    def load(g): return sum(cost(x) for x in sc.M[g]) + sum(cost(x) for x in sc.V[g])
    for it in items:
        e, k, x = it[:3]; skip = it[3] if len(it) > 3 else 0
        g = max(cur + skip, e)
        if k == "m" and prevk == "v": g = max(g, cur + 1)
        if k == "s":
            if prevk in ("v", "m"): g = max(g, cur + 1)
        else:
            while g < G and load(g) + cost(x) > cap: g += 1
        if g >= G or post:
            if not post or skip: post.append(("nop", e, skip))
            post.append(x); cur = G
        else:
            getattr(sc, k)(g, x); cur = g
        prevk = k
    out = []
    for x in post:
        if isinstance(x, tuple): out.append("s_nop 7" if not out else "s_nop 1")
        else: out.append(x)
    return out
```

```python
from common import *

vQ = 32
vO, vLS, vS, vE, vP, vCI = 128, 192, 200, 216, 232, 240
vRD, vRDN, vNEG, vM = 96, 97, 98, 100
aFR, aONE = 0, 64
E_KV = 60
sG, sG0, sG2, sRST, sEND, sDS, sRS, sHC, sWV, sBLK, sOUT, sHB, sUU = range(76, 89)
sMK = 64
sBB = 72; sCT = 73
THRESH = 2.0 ** 40

def Q(qt, db, blk=0): return Reg("v", vQ + db * 16 + (2 * blk + qt) * 4)
def O(dt, qt): return Reg("v", vO + (dt * 2 + qt) * 4)
def LS(qt): return Reg("v", vLS + qt * 4)
def S(kt, qt): return Reg("v", vS + (kt * 2 + qt) * 4)
def CI(kt, qt): return Reg("v", vCI + (kt * 2 + qt) * 4)
def P(qt): return Reg("v", vP + qt * 4)
def FR(n): return Reg("a", aFR + 4 * n)
ONE = Reg("a", aONE)

def qk(base=0):
    return [mfma(S(kt, qt), FR(base + 4 * kt + db), Q(qt, db), CI(kt, qt) if db == 0 else None) for kt in range(2) for qt in range(2) for db in range(4)]
def pv():
    return [mfma(O(dt, qt), FR(8 + dt), P(qt)) for dt in range(8) for qt in range(2)] + [mfma(LS(qt), ONE, P(qt)) for qt in range(2)]
def exp(e): return f"v_exp_f32 v{vE+e}, v{vS+e}"
def cvt(j):
    k = j >> 1; kt, qt = k >> 1, k & 1
    return f"v_cvt_pk_bf16_f32 v{vP + qt*4 + kt*2 + (j & 1)}, v{vE+2*j}, v{vE+2*j+1}"
def rd(n, off, reg=vRD): return f"ds_read_b128 {FR(n)}, v{reg} offset:{off}"
def dmas(half):
    pre = [f"s_mov_b32 m0, s{sDS}"] if half == 0 else [f"s_add_u32 m0, s{sDS}, 4096"]
    return pre, [f"buffer_load_dwordx4 v{vL16}, {srd(E_KV)}, s{sG if half == 0 else sG2} offen offset:{n*1024} lds" for n in range(4)]
ADV = [[f"s_add_u32 s{sG}, s{sG}, 32768"], [f"s_add_u32 s{sCT}, s{sCT}, 1"],
       [f"s_cmp_eq_u32 s{sCT}, s{sRST}", f"s_cselect_b32 s{sG}, s{sG0}, s{sG}"],
       [f"s_cmp_eq_u32 s{sCT}, s{sEND}", f"s_cselect_b32 s{E_KV+2}, 0, s{E_KV+2}"],
       [f"s_add_u32 s{sDS}, s{sDS}, 32768"], [f"s_and_b32 s{sDS}, s{sDS}, 0x1ffff"]]
G2 = f"s_add_u32 s{sG2}, s{sG}, 4096"
RS = [f"s_add_u32 s{sRS}, s{sRS}, 32768", f"s_and_b32 s{sRS}, s{sRS}, 0x1ffff"]
RDN = f"v_add_u32 v{vRDN}, s{sRS}, v{vL16}"
RDM = f"v_mov_b32 v{vRD}, v{vRDN}"
RDPOS = [(0, 6), (2, 7), (4, 8), (6, 9), (8, 10), (10, 11), (12, 12), (14, 13), (16, 14), (16, 15),
         (20, 0), (22, 1), (22, 2), (26, 3), (28, 4), (32, 5)]
DMAPOS = [5, 18, 24, 30]

def half(hf):
    sc = Sched(qk() + pv())
    for g, n in RDPOS:
        if g < 20: sc.m(g, rd(n, hf * 16384 + n * 1024))
        elif hf == 0: sc.m(g, rd(n, 16384 + n * 1024))
        else: sc.m(g, rd(n, n * 1024, vRDN))
    for e in range(16): sc.v((7 + 2 * e) % 34, exp(e))
    for j in range(8): sc.v(2 * j, cvt(j))
    pre, ld = dmas(hf)
    sc.s(4, *pre)
    for g, x in zip(DMAPOS, ld): sc.m(g, x)
    return sc
def pre_reads(): return [rd(n, n * 1024) for g, n in RDPOS if g >= 20]

def free_s(sc, g, ops, lim=33):
    for grp in ops:
        while sc.S[g] and g < lim: g += 1
        sc.s(g, *grp); g += 1
    return g

def step_tail(A):
    pre, ld = dmas(1); A.ext(pre); A(RDM); A.ext(ld)
    for grp in ADV[4:]: A.ext(grp)
def step_full(A):
    A("s_waitcnt vmcnt(8)", "s_barrier")
    pre, ld = dmas(0); A.ext(pre); A(G2); A.ext(ld); A.ext(RS); A(RDN)
    for grp in ADV[:4]: A.ext(grp) if grp is not ADV[3] else None
    step_tail_b(A)
def step_tail_b(A):
    pre, ld = dmas(1); A.ext(pre); A(RDM); A.ext(ld)
    for grp in ADV[3:]: A.ext(grp)

def mask_ci(A):
    for r in range(4):
        for k in (0, 1): A(f"v_cndmask_b32 v{CI(k,k).b+r}, v{vNEG}, v{CI(k,k).b+r}, s[{sMK+2*r}:{sMK+2*r+1}]")
        A(f"v_mov_b32 v{CI(1,0).b+r}, v{vNEG}")

def row_max(A):
    for qt in range(2):
        a, b = S(0, qt).b, S(1, qt).b
        A(f"v_max3_f32 v{vM+qt}, v{a}, v{a+1}, v{a+2}", f"v_max3_f32 v{vM+2+qt}, v{a+3}, v{b}, v{b+1}")
    for qt in range(2):
        b = S(1, qt).b
        A(f"v_max3_f32 v{vM+qt}, v{vM+qt}, v{b+2}, v{b+3}")
    for qt in range(2): A(f"v_max_f32 v{vM+qt}, v{vM+qt}, v{vM+2+qt}")
    for sw in ("v_permlane16_swap_b32", "v_permlane32_swap_b32"):
        A(f"v_mov_b32 v{vM+2}, v{vM}", f"v_mov_b32 v{vM+3}, v{vM+1}", "s_nop 1",
          f"{sw} v{vM}, v{vM+2}", f"{sw} v{vM+1}, v{vM+3}",
          f"v_max_f32 v{vM}, v{vM}, v{vM+2}", f"v_max_f32 v{vM+1}, v{vM+1}, v{vM+3}")

def attn_setup(A):
    A(f"s_mov_b64 s[{E_KV}:{E_KV+1}], s[{S_WS}:{S_WS+1}]", f"s_mov_b32 s{E_KV+2}, {WS_BYTES}", f"s_mov_b32 s{E_KV+3}, 0x20000",
      f"s_lshl_b32 s{sHB}, s{sH}, 20", f"s_add_u32 s{sHB}, s{sHB}, {KV_OFF}",
      f"s_xor_b32 s{sT0}, s{sW}, 1", f"s_add_u32 s{sT0}, s{sT0}, 1", f"s_lshl_b32 s{sT0}, s{sT0}, 13",
      f"s_add_u32 s{sG}, s{sHB}, s{sT0}", f"s_and_b32 s{sT0}, s{sT0}, 0x7fff", f"s_add_u32 s{sG0}, s{sHB}, s{sT0}",
      f"s_lshl_b32 s{sT1}, s{sI}, 1", f"s_sub_u32 s{sRST}, 32, s{sT1}", f"s_cmp_eq_u32 s{sW}, 2", f"s_cselect_b32 s{sT2}, 1, 0",
      f"s_sub_u32 s{sRST}, s{sRST}, s{sT2}", f"s_mov_b32 s{sEND}, 34", f"s_mov_b32 s{sCT}, 0",
      f"s_lshl_b32 s{sDS}, s{sW}, 13", f"s_add_u32 s{sDS}, s{sDS}, 32768", f"s_mov_b32 s{sRS}, 32768",
      f"s_mov_b32 s{sBLK}, 0")

def first_dma_items():
    it = [("s", f"s_lshl_b32 s{sT0}, s{sW}, 11"), ("s", f"s_add_u32 m0, s{sT0}, 16384"), ("s", f"s_add_u32 s{sT0}, s{sT0}, s{sHB}")]
    it += [("m", f"buffer_load_dwordx4 v{vL16}, {srd(E_KV)}, s{sT0} offen offset:{n*1024} lds") for n in range(2)]
    for _ in range(2):
        for hf in range(2):
            pre, ld = dmas(hf)
            it += [("s", pre[0]), ("s", G2 if hf == 0 else "s_nop 0")] + [("m", x) for x in ld]
        it += [("s", x) for grp in ADV for x in grp]
    return it

def attention(A, stflag=""):
    A(f"v_mov_b32 v{vNEG}, 0x{f2u(-1e30):08x}", f"v_mov_b32 v{vM}, 0x3f803f80",
      f"v_lshrrev_b32 v{vM+1}, 4, v{vLANE}", f"v_lshlrev_b32 v{vM+1}, 2, v{vM+1}", f"v_and_b32 v{vM+2}, 15, v{vLANE}")
    for k in range(4): A(f"v_accvgpr_write_b32 a{aONE+k}, v{vM}")
    for r in range(4):
        A(f"v_add_u32 v{vM+3}, {r}, v{vM+1}", f"v_cmp_le_u32 s[{sMK+2*r}:{sMK+2*r+1}], v{vM+3}, v{vM+2}")
    A(f"s_sub_u32 s{sBB}, 15, s{sI}", f"s_mov_b32 s{sWV}, s{sW}")
    A("s_waitcnt vmcnt(8)", "s_barrier")
    for hf in range(2):
        pre, ld = dmas(hf); A(pre[0], G2 if hf == 0 else "s_nop 0"); A.ext(ld)
    for grp in ADV: A.ext(grp)
    A(f"v_add_u32 v{vRD}, s{sRS}, v{vL16}")
    A.label("L_blk")
    stamp_blk = STAMPS[0]
    A(f"s_sub_u32 s{sT0}, s{sRS}, 16384", f"s_and_b32 s{sT0}, s{sT0}, 0x1ffff", f"v_add_u32 v{vM}, s{sT0}, v{vL16}",
      f"s_lshl_b32 s{sUU}, s{sBB}, 2", f"s_add_u32 s{sUU}, s{sUU}, s{sWV}", f"s_add_u32 s{sHC}, s{sUU}, 1")
    for n in range(8): A(rd(8 + n, n * 1024, vM))
    A.ext(pre_reads())
    for k in range(0, 16, 2): A(f"v_mov_b64 v[{vCI+k}:{vCI+k+1}], 0")
    A(f"s_cmp_lg_u32 s{sUU}, 0", "s_cbranch_scc1 L_nomask0"); mask_ci(A); A.label("L_nomask0")
    sc = Sched(qk(8))
    z = [f"v_mov_b64 v[{r}:{r+1}], 0" for r in range(vO, vLS + 8, 2)]
    for g in range(16): sc.v(g, z[2 * g], z[2 * g + 1])
    w = sc.add_lgkm_waits([rd(8 + n, 0) for n in range(8)] + pre_reads())
    A("s_nop 0", w); sc.emit(A); A.ext(z[32:])
    A(f"s_mul_i32 s{sOUT}, s{sBB}, {NKS*8192}", f"s_lshl_b32 s{sT0}, s{sH}, 15", f"s_add_u32 s{sOUT}, s{sOUT}, s{sT0}",
      f"s_lshl_b32 s{sT0}, s{sWV}, 11", f"s_add_u32 s{sOUT}, s{sOUT}, s{sT0}", f"s_add_u32 s{sOUT}, s{sOUT}, {A3_OFF}")
    row_max(A)
    for k in range(4):
        for r in range(4): A(f"v_sub_f32 v{vS+4*k+r}, v{vS+4*k+r}, v{vM+(k&1)}")
    for k in range(4):
        for r in range(4):
            A(f"v_sub_f32 v{vCI+4*k+r}, 0, v{vM+(k&1)}")
            if 4 * k + r < 14: A(exp(4 * k + r))
    h0, h1 = half(0), half(1)
    h0.s(0, "s_waitcnt vmcnt(8)", "s_barrier")
    w0 = h0.add_lgkm_waits(pre_reads()); w1 = h1.add_lgkm_waits(pre_reads())
    assert w0 == w1
    for h in (h0, h1): h.S[33].insert(0, w0)
    g = free_s(h0, 5, [[G2], [RS[0]], [RS[1]]], 16); h0.v(26, RDN)
    h0.s(31, *ADV[0]); free_s(h0, 16, [[f"s_sub_u32 s{sHC}, s{sHC}, 1"], ADV[1]])
    h0.s(32, *ADV[2])
    h0.t(33, f"s_cmp_le_u32 s{sHC}, 2", "s_cbranch_scc1 L_sp0")
    h1.v(20, RDM)
    free_s(h1, 5, [ADV[4], ADV[5], [f"s_sub_u32 s{sHC}, s{sHC}, 1"]], 30)
    h1.s(31, *ADV[3])
    h1.t(33, f"s_cmp_gt_u32 s{sHC}, 2", "s_cbranch_scc1 L_loop")
    if STAMPS[0] == "fine":
        h1.s(28, "s_memtime s[92:93]"); h0.S[0].insert(0, "s_waitcnt lgkmcnt(0)")
        h0.v(0, "v_mov_b32 v3, s92", f"v_cmp_eq_u32 vcc, s97, v{vLANE}"); h0.s(1, "s_add_u32 s97, s97, 1"); h0.v(5, "v_cndmask_b32 v7, v7, v3, vcc")
        A("s_memtime s[92:93]")
    A(w0, f"s_cmp_lg_u32 s{sHC}, 2", "s_cbranch_scc1 L_loop")
    A.label("L_mask1"); mask_ci(A); A("s_nop 1")
    A(".p2align 3"); A.label("L_loop"); h0.emit(A)
    A.label("L_h1"); h1.emit(A)
    A(f"s_cmp_eq_u32 s{sHC}, 2", "s_cbranch_scc1 L_mask1", f"s_cmp_eq_u32 s{sHC}, 1", "s_cbranch_scc1 L_loop", "s_branch L_exit")
    A.label("L_sp0")
    A(f"s_cmp_eq_u32 s{sHC}, 1", "s_cbranch_scc1 L_h1", f"s_cmp_eq_u32 s{sHC}, 0", "s_cbranch_scc1 L_exit0")
    mask_ci(A); A("s_nop 0", "s_branch L_h1")
    A.label("L_exit0"); step_tail_b(A)
    A.label("L_exit")
    A("s_waitcnt lgkmcnt(0)", f"s_cmp_ge_u32 s{sWV}, 2", "s_cbranch_scc1 L_epi")
    step_full(A)
    A.label("L_epi")
    A(f"s_mov_b32 s{sT0}, 0x{f2u(THRESH):08x}", "s_nop 4",
      f"v_add_f32 v{vM+1}, v{LS(0).b}, v{LS(1).b}",
      f"v_cmp_ngt_f32 vcc, s{sT0}, v{vM+1}", "s_nop 4", "s_cbranch_vccnz L_slow")
    A.label("L_norm")
    A(f"v_rcp_f32 v{vM}, v{LS(0).b}", f"v_rcp_f32 v{vM+2}, v{LS(1).b}", "s_nop 0")
    for db in range(4):
        for qt in range(2):
            T0, T1 = O(2 * db, qt).b, O(2 * db + 1, qt).b
            for r in (T0, T0 + 2, T1, T1 + 2): A(f"v_pk_mul_f32 v[{r}:{r+1}], v[{r}:{r+1}], v[{vM+2*qt}:{vM+2*qt+1}] op_sel_hi:[1,0]")
            for k, r in enumerate((T0, T0 + 2, T1, T1 + 2)): A(f"v_cvt_pk_bf16_f32 v{T0+k}, v{r}, v{r+1}")
            A(f"buffer_store_dwordx4 v[{T0}:{T0+3}], v{vL16}, {srd(S_WS)}, s{sOUT} offen offset:{qt*1024}{stflag}")
        if db < 3: A(f"s_add_u32 s{sOUT}, s{sOUT}, 8192")
    A(f"s_cmp_eq_u32 s{sBLK}, 1", "s_cbranch_scc1 L_attn_done")
    A(f"s_mov_b32 s{sBLK}, 1", f"s_mov_b32 s{sBB}, s{sI}")
    for db in range(4):
        for k in range(0, 8, 2): A(f"v_mov_b64 v[{Q(0,db).b+k}:{Q(0,db).b+k+1}], v[{Q(0,db,1).b+k}:{Q(0,db,1).b+k+1}]")
    A("s_branch L_blk")

def slow_path(A):
    m, al = vM + 4, vM + 6
    A.label("L_slow")
    for r in range(vO, vLS + 8, 2): A(f"v_mov_b64 v[{r}:{r+1}], 0")
    A(f"v_mov_b32 v{m}, v{vNEG}", f"v_mov_b32 v{m+1}, v{vNEG}", f"s_mov_b32 s{sT1}, 0", f"s_mov_b32 s{sT2}, s{sHB}")
    A.label("L_slow_loop")
    for n in range(16):
        A(f"buffer_load_dwordx4 {FR(n)}, v{vL16}, {srd(S_WS)}, s{sT2} offen offset:{(n%4)*1024}")
        if n % 4 == 3: A(f"s_add_u32 s{sT2}, s{sT2}, 4096")
    for k in range(0, 16, 2): A(f"v_mov_b64 v[{vCI+k}:{vCI+k+1}], 0")
    A(f"s_cmp_lg_u32 s{sT1}, s{sUU}", "s_cbranch_scc1 L_slow_nm"); mask_ci(A); A.label("L_slow_nm")
    A("s_waitcnt vmcnt(0)", "s_nop 1"); A.ext(qk()); A("s_nop 7")
    row_max(A)
    for qt in range(2):
        A(f"v_max_f32 v{vM+qt}, v{vM+qt}, v{m+qt}", f"v_sub_f32 v{al+qt}, v{m+qt}, v{vM+qt}", f"v_mov_b32 v{m+qt}, v{vM+qt}",
          f"v_exp_f32 v{al+qt}, v{al+qt}")
    A("s_nop 0")
    for qt in range(2):
        for dt in range(8):
            for r in range(4): A(f"v_mul_f32 v{O(dt,qt).b+r}, v{O(dt,qt).b+r}, v{al+qt}")
        for r in range(4): A(f"v_mul_f32 v{LS(qt).b+r}, v{LS(qt).b+r}, v{al+qt}")
    for e in range(16): A(f"v_sub_f32 v{vS+e}, v{vS+e}, v{m+((e>>2)&1)}")
    for e in range(16): A(exp(e))
    A("s_nop 0")
    for j in range(8): A(cvt(j))
    A("s_nop 1"); A.ext(pv())
    A(f"s_add_u32 s{sT1}, s{sT1}, 1", f"s_cmp_le_u32 s{sT1}, s{sUU}", "s_cbranch_scc1 L_slow_loop", "s_nop 7", "s_branch L_norm")
```

```python
from asmlib import *
import math

XN_OFF   = 0x0000000
KV_OFF   = 0x0400000
A3_OFF   = 0x2400000
W3_OFF   = 0x3C00000
PART_OFF = 0x4400000
FLAG_OFF = 0x5000000
WS_BYTES = 0x10000000
NKS = 182

CSC = math.log2(math.e) / math.sqrt(128.0)

S_X, S_CKV, S_WQ, S_WUK, S_WUV, S_WO, S_WG, S_WU, S_WD, S_OUT, S_WS, S_DBG = [4 + 4 * i for i in range(12)]
SRD_INFO = {S_X: (0, 2621440), S_CKV: (8, 2097152), S_WQ: (16, 5242880), S_WUK: (24, 4194304), S_WUV: (32, 4194304),
            S_WO: (40, 5242880), S_WG: (56, 2211840), S_WU: (64, 2211840), S_WD: (72, 2211840),
            S_OUT: (80, 2621440), S_WS: (96, WS_BYTES), S_DBG: (88, 256)}
def srd(b): return f"s[{b}:{b+3}]"

sW = 52
sH = 53
sI = 54
sT0, sT1, sT2, sT3 = 55, 56, 57, 58
vL16 = 1
vLANE = 2

def kernel_head(A, name, srds, end):
    A(".p2align 8"); A(f".globl {name}"); A(f".type {name},@function"); A.label(name)
    A("s_cmp_ge_u32 s2, 256", f"s_cbranch_scc1 {end}")
    for b in srds:
        A(f"s_load_dwordx2 s[{b}:{b+1}], s[0:1], {SRD_INFO[b][0]}")
    for b in srds:
        A(f"s_mov_b32 s{b+2}, {SRD_INFO[b][1]}", f"s_mov_b32 s{b+3}, 0x20000")
    A("v_lshrrev_b32 v3, 6, v0", f"v_and_b32 v{vLANE}, 63, v0", f"v_readfirstlane_b32 s{sW}, v3",
      f"v_lshlrev_b32 v{vL16}, 4, v{vLANE}")
    A(f"s_and_b32 s{sH}, s2, 7", f"s_lshl_b32 s{sH}, s{sH}, 2", f"s_bfe_u32 s{sT0}, s2, 0x20003",
      f"s_add_u32 s{sH}, s{sH}, s{sT0}", f"s_lshr_b32 s{sI}, s2, 5")

STAMP_OFF = 0x5080000
STAMPS = [False]
def stamp(A, slot):
    if not STAMPS[0]: return
    A("s_memrealtime s[94:95]", "s_memtime s[92:93]", f"s_lshl_b32 s96, s2, 2", f"s_add_u32 s96, s96, s{sW}", "s_lshl_b32 s96, s96, 8",
      f"s_add_u32 s96, s96, {STAMP_OFF}", "s_waitcnt lgkmcnt(0)", "v_mov_b32 v3, s94",
      f"buffer_store_dword v3, off, {srd(S_WS)}, s96 offset:{slot*8}", "s_nop 0", "v_mov_b32 v3, s92",
      f"buffer_store_dword v3, off, {srd(S_WS)}, s96 offset:{slot*8+4}")

def fine_begin(A):
    if STAMPS[0]: A("s_mov_b32 s97, 0", "v_mov_b32 v7, 0")
def fine_dump(A, k):
    if STAMPS[0]:
        A(f"s_lshl_b32 s96, s2, 2", f"s_add_u32 s96, s96, s{sW}", "s_lshl_b32 s96, s96, 8", f"s_add_u32 s96, s96, {STAMP_OFF + 0x40000*(k+1)}",
          f"v_lshlrev_b32 v3, 2, v{vLANE}", f"buffer_store_dword v7, v3, {srd(S_WS)}, s96 offen")

def kernel_desc(name, vgpr=512, accum=256):
    return [f".amdhsa_kernel {name}", f"  .amdhsa_next_free_vgpr {vgpr}", "  .amdhsa_next_free_sgpr 102",
            f"  .amdhsa_accum_offset {accum}", "  .amdhsa_group_segment_fixed_size 0", "  .amdhsa_kernarg_size 104",
            "  .amdhsa_user_sgpr_count 2", "  .amdhsa_user_sgpr_kernarg_segment_ptr 1",
            "  .amdhsa_system_sgpr_workgroup_id_x 1", "  .amdhsa_float_denorm_mode_32 3", ".end_amdhsa_kernel"]
```

```python
from common import *

vAR = 4
vTR = 8
vTG = 16
vW0, vW1, vA = 20, 24, 28
vTMP = 32
aAF, aWF, aACC, vACC = 0, 64, 128, 64
E_W0, E_W1a, E_W1b, E_A = 60, 64, 68, 72
sOW0, sOW1, sOA0, sOA1, sSW0, sSW1, sSA, sD, sP1, sP2, sAD, sTRD, sCNT = range(76, 89)
LDS_A = 98304

def acc(p, rt):
    return Reg("a", aACC + (p * 4 + rt) * 4) if p < 4 else Reg("v", vACC + ((p - 4) * 4 + rt) * 4)
def afrag(par, rt, ks): return Reg("a", aAF + par * 32 + (rt * 2 + ks) * 4)
def wfrag(p, ks): return Reg("a", aWF + (p % 4) * 8 + ks * 4)

def tr_reads(ct, p):
    kind, col, _ = ct
    out = []
    for ks in range(2):
        for s in range(2):
            d = wfrag(p, ks).sub(2 * s, 2)
            if kind < 2: out.append(f"ds_read_b64_tr_b16 {d}, v{vTR+col} offset:{kind*16384 + (32*ks+4*s)*256}")
            else: out.append(f"ds_read_b64_tr_b16 {d}, v{vTG+col} offset:{16384 + (kind-2)*2048 + ks*8192 + s*512}")
    return out
def a_reads(par):
    return [f"ds_read_b128 {afrag(par, rt, ks)}, v{vAR+ks} offset:{par*32768 + rt*2048}" for rt in range(4) for ks in range(2)]
def dma_groups(par):
    g = []
    for hi in range(2):
        g.append((f"s_add_u32 m0, s{sAD}, {par*32768 + hi*4096}",
                  [f"buffer_load_dwordx4 v{vA+n}, {srd(E_A)}, s{sOA0+hi} offen offset:{n*1024} lds" for n in range(4)]))
    g.append((f"s_mov_b32 m0, s{sD}", [f"buffer_load_dwordx4 v{vW0+n}, {srd(E_W0)}, s{sOW0} offen offset:{n*1024} lds" for n in range(4)]))
    g.append((f"s_add_u32 m0, s{sD}, 16384",
              [f"buffer_load_dwordx4 v{vW1+n}, {srd(E_W1a if n < 2 else E_W1b)}, s{sOW1} offen offset:{n*1024} lds" for n in range(4)]))
    return g
ADV_A = [f"s_add_u32 s{sOA0}, s{sOA0}, s{sSA}", f"s_add_u32 s{sOA1}, s{sOA1}, s{sSA}"]
ADV_W0 = f"s_add_u32 s{sOW0}, s{sOW0}, s{sSW0}"
ADV_W1 = f"s_add_u32 s{sOW1}, s{sOW1}, s{sSW1}"
ROT = [f"s_mov_b32 s{sT3}, s{sP2}", f"s_mov_b32 s{sP2}, s{sP1}", f"s_mov_b32 s{sP1}, s{sD}", f"s_mov_b32 s{sD}, s{sT3}"]

def place(sc, g, txt, cap=1):
    while len(sc.M[g]) >= cap or any(x.startswith("buffer") for x in sc.M[g]): g += 1
    sc.m(g, txt); return g

def slab(cts, par, first=False, last=False, dma=True, naddr=8, lastbar=False):
    n = len(cts); G = 8 * n
    mf = []
    for p, ct in enumerate(cts):
        for rt in range(4):
            for ks in range(2):
                d = acc(p, rt); w = wfrag(p, ks); a = afrag(par, rt, ks)
                c = "0" if (first and ks == 0) else None
                mf.append(mfma(d, a, w, c) if ct[2] else mfma(d, w, a, c))
    sc = Sched(mf)
    for p in range(2, n):
        rd = tr_reads(cts[p], p)
        for k, x in enumerate(rd):
            g = 8 * (p - 2) + 1 + 2 * k if p < n - 1 else 8 * (p - 3) + 2 + 2 * k
            sc.m(g, x)
    B = G - 16
    if not last:
        for k, x in enumerate(tr_reads(cts[0], 0)): sc.m(B + 1 + 2 * k, x)
        for k, x in enumerate(tr_reads(cts[1], 1)): sc.m(B + 8 + 2 * k, x)
    pos = []
    if dma:
        ng = 4 if n == 16 else 3
        for gi, (m0, lds) in enumerate(dma_groups(par)[:ng]):
            for k, x in enumerate(lds):
                g = place(sc, max((G * (4 * gi + k)) // (4 * ng) + 2, pos[-1] + 2 if pos else 0), x); pos.append(g)
                if k == 0: sc.s(g - 1, m0)
        sc.s(pos[7] + 1, ADV_A[0]); sc.s(pos[7] + 2, ADV_A[1])
        sc.s(min(pos[11] + 1, G - 2), ADV_W0)
        if ng == 4: sc.s(min(pos[15] + 1, G - 2), ADV_W1)
        assert pos[-1] <= G - 3
    if last and lastbar:
        sc.s(B, "s_waitcnt vmcnt(0) lgkmcnt(0)", "s_barrier")
    if not last:
        ga = G // 2 + 4 if n == 16 else 16
        sc.s(ga, f"s_waitcnt vmcnt({len(pos) - 8 + sum(1 for q in pos if q < ga)})")
        g = ga + 1
        for x in a_reads(1 - par): g = place(sc, g, x, 1 if n == 16 else 2) + (1 if n == 16 else 2)
        assert g <= B - 6, g
        sc.s(B, f"s_waitcnt vmcnt({sum(1 for q in pos if q < B)}) lgkmcnt(0)", "s_barrier")
        if STAMPS[0] == "fine":
            sc.s(B - 3, "s_memtime s[92:93]"); sc.v(B, "v_mov_b32 v3, s92", f"v_cmp_eq_u32 vcc, s97, v{vLANE}"); sc.s(B + 1, "s_add_u32 s97, s97, 1"); sc.v(B + 4, "v_cndmask_b32 v7, v7, v3, vcc")
        sc.s(B - 14, f"s_sub_u32 s{sTRD}, s{sP1}, s{sP2}")
        g0 = max(B - 12, pos[-4])
        for k, x in enumerate(ROT): sc.s(g0 + k, x)
        regs = [vTR + k for k in range(8)] + ([vTG + k for k in range(4)] if naddr > 8 else [])
        lastuse = {r: -1 for r in regs}
        for g in range(B):
            for x in sc.M[g]:
                if x.startswith("ds_read_b64_tr"):
                    lastuse[int(x.split(", v")[1].split()[0])] = g
        g = B - 12
        for r in sorted(regs, key=lambda r: lastuse[r]):
            g = max(g, lastuse[r] + 1)
            sc.v(g, f"v_add_u32 v{r}, s{sTRD}, v{r}"); g += 1
        assert g <= B + 1, g
    return sc

def tail_ds(cts):
    return tr_reads(cts[0], 0) + tr_reads(cts[1], 1)

def setup_tr(A, with_g):
    t0, t1, t2, t3 = vTMP, vTMP + 1, vTMP + 2, vTMP + 3
    A(f"v_lshrrev_b32 v{t0}, 4, v{vLANE}",
      f"v_bfe_u32 v{t1}, v{vLANE}, 2, 2",
      f"v_and_b32 v{t2}, 1, v{t0}",
      f"v_lshl_or_b32 v{t3}, v{t2}, 2, v{t1}",
      f"v_lshl_add_u32 v{t0+4}, v{t0}, 3, v{t1}",
      f"v_and_b32 v{t0+5}, 3, v{vLANE}",
      f"v_lshlrev_b32 v{t0+5}, 3, v{t0+5}",
      f"v_lshl_add_u32 v{t0+4}, v{t0+4}, 8, v{t0+5}")
    for k in range(8):
        A(f"v_xor_b32 v{t0+6}, {k}, v{t3}", f"v_lshl_add_u32 v{vTR+k}, v{t0+6}, 5, v{t0+4}")
    if with_g:
        A(f"v_lshrrev_b32 v{t0+6}, 1, v{t0}", f"v_lshl_add_u32 v{t0+4}, v{t0+6}, 12, v{t0+5}",
          f"v_lshl_add_u32 v{t0+4}, v{t2}, 10, v{t0+4}", f"v_lshl_add_u32 v{t0+4}, v{t1}, 7, v{t0+4}",
          f"v_lshrrev_b32 v{t3}, 1, v{t1}", f"v_lshl_or_b32 v{t3}, v{t2}, 1, v{t3}")
        for k in range(4):
            A(f"v_xor_b32 v{t0+6}, {k}, v{t3}", f"v_lshl_add_u32 v{vTG+k}, v{t0+6}, 5, v{t0+4}")

def setup_w256(A, dst):
    t0 = vTMP
    A(f"v_lshrrev_b32 v{t0}, 4, v{vLANE}", f"v_and_b32 v{t0+1}, 15, v{vLANE}")
    for n in range(4):
        A(f"v_or_b32 v{t0+2}, {(n >> 1) << 2}, v{t0}", f"v_lshlrev_b32 v{t0+2}, 1, v{t0+2}",
          f"v_xor_b32 v{t0+2}, v{t0+2}, v{t0+1}", f"v_lshlrev_b32 v{t0+2}, 4, v{t0+2}",
          f"v_lshl_add_u32 v{t0+2}, v{t0}, 13, v{t0+2}", f"v_add_u32 v{dst+n}, {n*(32768-1024)}, v{t0+2}")

def setup_ring(A):
    A(f"s_lshl_b32 s{sP2}, s{sW}, 12", f"s_add_u32 s{sP1}, s{sP2}, 32768", f"s_add_u32 s{sD}, s{sP2}, 65536",
      f"s_lshl_b32 s{sAD}, s{sW}, 13", f"s_add_u32 s{sAD}, s{sAD}, {LDS_A}")

def copy_srd(A, dst, src):
    A(f"s_mov_b64 s[{dst}:{dst+1}], s[{src}:{src+1}]", f"s_mov_b32 s{dst+2}, s{src+2}", f"s_mov_b32 s{dst+3}, 0x20000")

def prologue_dma(A, ng=4):
    for par, reg in ((0, sP2), (1, sP1)):
        for gi, (m0, lds) in enumerate(dma_groups(par)[:ng]):
            A(m0.replace(f"s{sD}", f"s{reg}") if gi >= 2 else m0, "s_nop 0"); A.ext(lds)
        A.ext(ADV_A); A(ADV_W0, ADV_W1)

def prologue_reads(A, cts, extra_vm=0):
    A(f"s_waitcnt vmcnt({(16 if len(cts) == 16 else 12) + extra_vm})", "s_barrier")
    A.ext(a_reads(0)); A("s_waitcnt lgkmcnt(0)"); A.ext(tail_ds(cts))

def kill_streams(cnt_val):
    out = [f"s_cmp_eq_u32 s{sCNT}, {cnt_val}"]
    for e in (E_A, E_W0, E_W1a, E_W1b): out.append(f"s_cselect_b32 s{e+2}, 0, s{e+2}")
    return out

def run_gemm(A, tag, cts, nslab, naddr, first_hook=None, last_hook=None, lastbar=False):
    assert nslab % 2 == 0
    td = tail_ds(cts)
    s0 = slab(cts, 0, first=True, naddr=naddr)
    s1 = slab(cts, 1, naddr=naddr); s2 = slab(cts, 0, naddr=naddr)
    sl = slab(cts, 1, last=True, dma=False, naddr=naddr, lastbar=lastbar)
    if first_hook: first_hook(s0)
    post = last_hook(sl) if last_hook else []
    G = len(s0.mf); nit = (nslab - 2) // 2
    ws = [s.add_lgkm_waits(td) for s in (s0, s1, s2, sl)]
    assert len(set(ws)) == 1
    for s in (s0, s1, s2): s.S[G - 1].insert(0, ws[0])
    s1.t(G - 1, *kill_streams(nit - 1))
    s2.s(G - 3, f"s_add_u32 s{sCNT}, s{sCNT}, 1")
    s2.t(G - 1, f"s_cmp_lt_u32 s{sCNT}, {nit}", f"s_cbranch_scc1 L_{tag}_loop")
    A(f"s_mov_b32 s{sCNT}, 0", ws[0])
    s0.emit(A)
    A(".p2align 3"); A.label(f"L_{tag}_loop")
    s1.emit(A); s2.emit(A); sl.emit(A)
    A.ext(post)
```

```python
from gemm import *

KV_CTS = [(0, c, False) for c in range(8)] + [(1, c, True) for c in range(8)]
vX = vTMP
vXS = 6
sLN = 89; sKV = 90

def ln_loads(A):
    t = vTMP + 10
    A(f"s_lshl_b32 s{sT0}, s2, 3", f"s_lshl_b32 s{sT1}, s{sW}, 1", f"s_add_u32 s{sT0}, s{sT0}, s{sT1}",
      f"s_mul_i32 s{sT1}, s{sT0}, 1280",
      f"v_lshrrev_b32 v{t}, 5, v{vLANE}", f"v_and_b32 v{t+1}, 31, v{vLANE}",
      f"v_mul_u32_u24 v{t+2}, 1280, v{t}", f"v_lshl_add_u32 v{t+2}, v{t+1}, 3, v{t+2}")
    A("s_waitcnt lgkmcnt(0)")
    for i in range(5):
        A(f"buffer_load_dwordx2 v[{vX+2*i}:{vX+2*i+1}], v{t+2}, {srd(S_X)}, s{sT1} offen offset:{i*256}")
    A(f"s_lshr_b32 s{sLN}, s{sT0}, 4", f"s_mul_i32 s{sLN}, s{sLN}, 20480", f"s_and_b32 s{sT0}, s{sT0}, 15",
      f"s_lshl_b32 s{sT0}, s{sT0}, 4", f"s_add_u32 s{sLN}, s{sLN}, s{sT0}", f"s_add_u32 s{sLN}, s{sLN}, {XN_OFF}",
      f"v_lshrrev_b32 v{t+3}, 3, v{t+1}", f"v_lshlrev_b32 v{t+3}, 10, v{t+3}",
      f"v_bfe_u32 v{t+4}, v{t+1}, 1, 2", f"v_lshl_add_u32 v{t+3}, v{t+4}, 8, v{t+3}",
      f"v_lshl_add_u32 v{t+3}, v{t}, 4, v{t+3}", f"v_and_b32 v{t+4}, 1, v{t+1}",
      f"v_lshl_add_u32 v{vXS}, v{t+4}, 3, v{t+3}")

def ln_items(stflag=""):
    u = vX + 10; a, b, d = 62, 63, 7
    it = []
    V = lambda x, skip=0: it.append((0, "v", x, skip))
    for i in range(10):
        V(f"v_lshlrev_b32 v{u+2*i}, 16, v{vX+i}"); V(f"v_and_b32 v{u+2*i+1}, 0xffff0000, v{vX+i}")
    V(f"v_add_f32 v{a}, v{u}, v{u+1}")
    for i in range(2, 20): V(f"v_add_f32 v{a}, v{a}, v{u+i}")
    def red():
        for r in (8, 4, 2, 1): V(f"v_add_f32_dpp v{a}, v{a}, v{a} row_ror:{r} row_mask:0xf bank_mask:0xf", 2)
        V(f"v_mov_b32 v{b}, v{a}"); V(f"v_permlane16_swap_b32 v{a}, v{b}", 2); V(f"v_add_f32 v{a}, v{a}, v{b}", 1)
    def rnd(r):
        V(f"v_cvt_pk_bf16_f32 v{r}, v{r}, v{r}"); V(f"v_lshlrev_b32 v{r}, 16, v{r}")
    red()
    V(f"v_mul_f32 v{d}, 0x{f2u(1/640):08x}, v{a}")
    V(f"v_cvt_pk_bf16_f32 v{b}, v{d}, v{d}"); V(f"v_lshlrev_b32 v{b}, 16, v{b}")
    V(f"v_sub_f32 v{d}, v{d}, v{b}")
    for i in range(20): V(f"v_sub_f32 v{u+i}, v{u+i}, v{b}")
    V(f"v_mul_f32 v{a}, v{u}, v{u}")
    for i in range(1, 20): V(f"v_fmac_f32 v{a}, v{u+i}, v{u+i}")
    red()
    V(f"v_mul_f32 v{a}, 0x{f2u(1/640):08x}, v{a}")
    V(f"v_fma_f32 v{a}, -v{d}, v{d}, v{a}")
    V(f"v_max_f32 v{a}, 0, v{a}")
    rnd(a); V(f"v_add_f32 v{a}, 0x{f2u(1e-5):08x}, v{a}"); rnd(a)
    V(f"v_sqrt_f32 v{a}, v{a}"); V(f"v_cvt_pk_bf16_f32 v{a}, v{a}, v{a}", 1); V(f"v_lshlrev_b32 v{a}, 16, v{a}")
    V(f"v_rcp_f32 v{a}, v{a}"); V(f"v_mul_f32 v{a}, 0x{f2u(CSC):08x}, v{a}", 1)
    for i in range(5):
        for k in range(4): V(f"v_mul_f32 v{u+4*i+k}, v{u+4*i+k}, v{a}")
        V(f"v_cvt_pk_bf16_f32 v{vX+2*i}, v{u+4*i}, v{u+4*i+1}"); V(f"v_cvt_pk_bf16_f32 v{vX+2*i+1}, v{u+4*i+2}, v{u+4*i+3}")
    for i in range(5):
        it.append((0, "m", f"buffer_store_dwordx2 v[{vX+2*i}:{vX+2*i+1}], v{vXS}, {srd(S_WS)}, s{sLN} offen{stflag}"))
        if i < 4: it.append((0, "s", f"s_add_u32 s{sLN}, s{sLN}, 4096"))
    return it

def pack_items(it, T0, T1, e0, e1, tmp):
    if T0.k == "v":
        dst = Reg("v", T0.b)
        it.append((e0, "v", f"v_cvt_pk_bf16_f32 v{dst.b}, v{T0.b}, v{T0.b+1}")); it.append((e0, "v", f"v_cvt_pk_bf16_f32 v{dst.b+1}, v{T0.b+2}, v{T0.b+3}"))
        it.append((e1, "v", f"v_cvt_pk_bf16_f32 v{dst.b+2}, v{T1.b}, v{T1.b+1}")); it.append((e1, "v", f"v_cvt_pk_bf16_f32 v{dst.b+3}, v{T1.b+2}, v{T1.b+3}"))
        return dst
    for k in range(4): it.append((e0, "v", f"v_accvgpr_read_b32 v{tmp+k}, a{T0.b+k}"))
    for k in range(4): it.append((e1, "v", f"v_accvgpr_read_b32 v{tmp+4+k}, a{T1.b+k}"))
    for k in range(4): it.append((e1, "v", f"v_cvt_pk_bf16_f32 v{tmp+k}, v{tmp+2*k}, v{tmp+2*k+1}"))
    return Reg("v", tmp)

def kv_epilogue(stflag=""):
    def hook(sc):
        it = []; n = 0
        done = lambda p, rt: 8 * p + 2 * rt + 1 + 8
        def store(r, off):
            it.append((0, "s", f"s_add_u32 s{sT0 + n % 2}, s{sKV}, {off & ~4095}"))
            it.append((0, "m", f"buffer_store_dwordx4 {r}, v{vL16}, {srd(S_WS)}, s{sT0 + n % 2} offen offset:{off & 4095}{stflag}"))
        for db in range(4):
            for rt in range(4):
                r = pack_items(it, acc(2 * db, rt), acc(2 * db + 1, rt), done(2 * db, rt), done(2 * db + 1, rt), vTMP + 8 * (n % 4))
                store(r, (rt >> 1) * 16384 + (rt & 1) * 4096 + db * 1024); n += 1
        for dt in range(8):
            for kb in range(2):
                p = 8 + dt
                r = pack_items(it, acc(p, 2 * kb), acc(p, 2 * kb + 1), done(p, 2 * kb), done(p, 2 * kb + 1), 0)
                store(r, kb * 16384 + 8192 + dt * 1024); n += 1
        return fill(sc, it)
    return hook

def kv_setup(A):
    t0 = vTMP + 20
    setup_ring(A)
    A(f"v_lshrrev_b32 v{t0}, 3, v{vLANE}", f"v_lshrrev_b32 v{t0+1}, 4, v{vLANE}", f"v_and_b32 v{t0+2}, 7, v{vLANE}")
    for n in range(4):
        A(f"v_or_b32 v{t0+3}, {(n & 1) << 2}, v{t0+1}", f"v_xor_b32 v{t0+3}, v{t0+3}, v{t0+2}", f"v_lshlrev_b32 v{t0+3}, 4, v{t0+3}",
          f"v_lshl_add_u32 v{t0+3}, v{t0}, 10, v{t0+3}", f"v_add_u32 v{vA+n}, {n*(8192-1024)}, v{t0+3}")
    A(f"v_and_b32 v{t0}, 15, v{vLANE}", f"v_lshrrev_b32 v{t0+2}, 1, v{t0}", f"v_xor_b32 v{t0+2}, v{t0+2}, v{t0+1}",
      f"v_lshlrev_b32 v{t0+2}, 4, v{t0+2}", f"v_lshl_add_u32 v{t0+2}, v{t0}, 7, v{t0+2}",
      f"v_add_u32 v{vAR}, s{sAD}, v{t0+2}", f"v_xor_b32 v{vAR+1}, 64, v{vAR}")
    A(f"s_lshl_b32 s{sOA0}, s{sI}, 2", f"s_add_u32 s{sOA0}, s{sOA0}, s{sW}",
      f"s_lshl_b32 s{sKV}, s{sOA0}, 15", f"s_lshl_b32 s{sT0}, s{sH}, 20", f"s_add_u32 s{sKV}, s{sKV}, s{sT0}", f"s_add_u32 s{sKV}, s{sKV}, {KV_OFF}",
      f"s_lshl_b32 s{sOA0}, s{sOA0}, 16", f"s_add_u32 s{sOA1}, s{sOA0}, 32768", f"s_mov_b32 s{sSA}, 128",
      f"s_lshl_b32 s{sOW0}, s{sW}, 17", f"s_lshl_b32 s{sT0}, s{sH}, 8", f"s_add_u32 s{sOW0}, s{sOW0}, s{sT0}",
      f"s_mov_b32 s{sOW1}, s{sOW0}", f"s_mov_b32 s{sSW0}, 524288", f"s_mov_b32 s{sSW1}, 524288")

def gen_k1(A, name):
    kernel_head(A, name, [S_X, S_CKV, S_WUK, S_WUV, S_WS], f"L_{name}_end")
    stamp(A, 0)
    setup_w256(A, vW0)
    for n in range(4): A(f"v_mov_b32 v{vW1+n}, v{vW0+n}")
    setup_tr(A, False)
    kv_setup(A)
    ln_loads(A)
    copy_srd(A, E_A, S_CKV); copy_srd(A, E_W0, S_WUK); copy_srd(A, E_W1a, S_WUV); copy_srd(A, E_W1b, S_WUV)
    prologue_dma(A)
    A("s_waitcnt vmcnt(32)")
    for it in ln_items():
        if len(it) > 3 and it[3]: A(f"s_nop {it[3]-1}")
        A(it[2])
    A(f"s_lshl_b32 s{sT0}, s2, 2", f"s_add_u32 s{sT0}, s{sT0}, s{sW}", f"s_lshl_b32 s{sT0}, s{sT0}, 7", f"s_add_u32 s{sT0}, s{sT0}, {FLAG_OFF}",
      "v_mov_b64 v[62:63], 0", "v_mov_b64 v[60:61], 0", f"buffer_store_dwordx4 v[60:63], off, {srd(S_WS)}, s{sT0}")
    prologue_reads(A, KV_CTS, extra_vm=6)
    stamp(A, 1); fine_begin(A)
    run_gemm(A, "kv", KV_CTS, 8, 8, last_hook=kv_epilogue())
    stamp(A, 2); fine_dump(A, 0)
    if STAMPS[0]: A("s_waitcnt vmcnt(0)"); stamp(A, 3)
    A.label(f"L_{name}_end"); A("s_endpgm")
```

```python
from gemm import *
import attn
from k1 import pack_items

Q_CTS = [(0, c, False) for c in range(8)]
QGU_CTS = Q_CTS + [x for c in range(4) for x in ((2, c, False), (3, c, False))]
sPHI, sHA, sHBk = 89, 90, 91
sC = 98

def qgu_setup(A):
    t0 = vTMP
    setup_ring(A)
    setup_w256(A, vW0)
    setup_tr(A, True)
    A(f"s_and_b32 s{sT0}, s{sH}, 3", f"s_lshr_b32 s{sT1}, s{sH}, 2", f"s_mul_i32 s{sPHI}, s{sT1}, 3", f"s_add_u32 s{sPHI}, s{sPHI}, s{sT0}",
      f"s_sub_u32 s{sT2}, s{sT1}, s{sI}", f"s_add_u32 s{sT2}, s{sT2}, 3", f"s_and_b32 s{sT2}, s{sT2}, 7", f"s_add_u32 s{sT2}, s{sT2}, 24",
      f"s_cmp_eq_u32 s{sT0}, 3", f"s_cselect_b32 s{sPHI}, s{sT2}, s{sPHI}")
    A(f"v_lshrrev_b32 v{t0}, 3, v{vLANE}", f"v_and_b32 v{t0+1}, 7, v{vLANE}", f"v_bfe_u32 v{t0+2}, v{vLANE}, 4, 1",
      f"v_mul_u32_u24 v{t0}, 3456, v{t0}")
    for n in range(2):
        A(f"v_or_b32 v{t0+3}, {2*n}, v{t0+2}", f"v_lshlrev_b32 v{t0+3}, 1, v{t0+3}", f"v_xor_b32 v{t0+3}, v{t0+3}, v{t0+1}",
          f"v_lshl_add_u32 v{t0+3}, v{t0+3}, 4, v{t0}",
          f"v_add_u32 v{vW1+n}, {n*(8*3456-1024) + 2048}, v{t0+3}", f"v_add_u32 v{vW1+2+n}, {n*(8*3456-1024)}, v{t0+3}")
    for n in range(4): A(f"v_add_u32 v{vA+n}, {(n>>1)*(20480-2048)}, v{vL16}")
    A(f"v_add_u32 v{vAR}, s{sAD}, v{vL16}", f"v_add_u32 v{vAR+1}, 1024, v{vAR}")
    A(f"s_sub_u32 s{sT0}, 15, s{sI}", f"s_lshl_b32 s{sT1}, s{sW}, 1",
      f"s_lshl_b32 s{sOA0}, s{sT0}, 3", f"s_add_u32 s{sOA0}, s{sOA0}, s{sT1}", f"s_mul_i32 s{sOA0}, s{sOA0}, 20480",
      f"s_lshl_b32 s{sOA1}, s{sI}, 3", f"s_add_u32 s{sOA1}, s{sOA1}, s{sT1}", f"s_mul_i32 s{sOA1}, s{sOA1}, 20480",
      f"s_mov_b32 s{sSA}, 2048",
      f"s_lshl_b32 s{sOW0}, s{sW}, 17", f"s_lshl_b32 s{sT2}, s{sH}, 8", f"s_add_u32 s{sOW0}, s{sOW0}, s{sT2}", f"s_mov_b32 s{sSW0}, 524288",
      f"s_mul_i32 s{sOW1}, s{sW}, {16*3456}", f"s_lshl_b32 s{sT2}, s{sPHI}, 7", f"s_add_u32 s{sOW1}, s{sOW1}, s{sT2}", f"s_mov_b32 s{sSW1}, {64*3456}",
      f"s_lshl_b32 s{sT2}, s{sPHI}, 14", f"s_lshl_b32 s{sT1}, s{sW}, 11", f"s_add_u32 s{sT2}, s{sT2}, s{sT1}", f"s_add_u32 s{sT2}, s{sT2}, {A3_OFF + 128*8192}",
      f"s_mul_i32 s{sHA}, s{sT0}, {NKS*8192}", f"s_add_u32 s{sHA}, s{sHA}, s{sT2}",
      f"s_mul_i32 s{sHBk}, s{sI}, {NKS*8192}", f"s_add_u32 s{sHBk}, s{sHBk}, s{sT2}")
    assert XN_OFF == 0

def qgu_srds(A):
    copy_srd(A, E_A, S_WS); copy_srd(A, E_W0, S_WQ)
    for e, s_ in ((E_W1a, S_WG), (E_W1b, S_WU)):
        A(f"s_sub_u32 s{e}, s{s_}, 2048", f"s_subb_u32 s{e+1}, s{s_+1}, 0", f"s_add_u32 s{e+2}, s{s_+2}, 2048", f"s_mov_b32 s{e+3}, 0x20000")

def q_items():
    it = []; done = lambda p, rt: 8 * p + 2 * rt + 1 + 8
    for db in range(4):
        for rt in range(4):
            T0, T1 = acc(2 * db, rt), acc(2 * db + 1, rt); d = attn.vQ + db * 16 + rt * 4
            for k, (T, p) in enumerate(((T0, 2 * db), (T1, 2 * db + 1))):
                e = done(p, rt)
                for hh in range(2):
                    if T.k == "a":
                        it += [(e, "v", f"v_accvgpr_read_b32 v{d+2*k+hh}, a{T.b+2*hh}"), (e, "v", f"v_accvgpr_read_b32 v6, a{T.b+2*hh+1}"),
                               (e, "v", f"v_cvt_pk_bf16_f32 v{d+2*k+hh}, v{d+2*k+hh}, v6")]
                    else:
                        it.append((e, "v", f"v_cvt_pk_bf16_f32 v{d+2*k+hh}, v{T.b+2*hh}, v{T.b+2*hh+1}"))
    return it

def geglu(A, stflag=""):
    c1 = -2 * math.log2(math.e) * math.sqrt(2 / math.pi); c2 = c1 * 0.044715
    k1_, k2_, k3_ = c1 / CSC, c2 / CSC ** 3, CSC ** 2
    A(f"s_mov_b32 s{sC}, 0x{f2u(k2_):08x}", f"s_mov_b32 s{sC+2}, 0x{f2u(k3_):08x}", f"v_mov_b32 v96, 0x{f2u(k1_):08x}", f"v_mov_b32 v98, 0x{f2u(k3_):08x}")
    t = 100
    for fb in range(2):
        for rt in range(4):
            prs = []
            for k in range(2):
                g, u = acc(8 + 4 * fb + 2 * k, rt).b, acc(9 + 4 * fb + 2 * k, rt).b
                prs += [(g, u), (g + 2, u + 2)]
            P2 = lambda r: f"v[{r}:{r+1}]"
            T = [t + 2 * n for n in range(4)]
            for n, (g, u) in enumerate(prs): A(f"v_pk_mul_f32 {P2(T[n])}, {P2(g)}, {P2(g)}")
            for n, (g, u) in enumerate(prs): A(f"v_pk_fma_f32 {P2(T[n])}, {P2(T[n])}, s[{sC}:{sC+1}], v[96:97] op_sel_hi:[1,0,0]")
            for n, (g, u) in enumerate(prs): A(f"v_pk_mul_f32 {P2(T[n])}, {P2(T[n])}, {P2(g)}")
            for n, (g, u) in enumerate(prs): A(f"v_exp_f32 v{T[n]}, v{T[n]}", f"v_exp_f32 v{T[n]+1}, v{T[n]+1}", f"v_pk_mul_f32 {P2(u)}, {P2(u)}, {P2(g)}")
            for n, (g, u) in enumerate(prs): A(f"v_pk_fma_f32 {P2(T[n])}, {P2(T[n])}, s[{sC+2}:{sC+3}], v[98:99] op_sel_hi:[1,0,0]")
            for n in range(8): A(f"v_rcp_f32 v{t+n}, v{t+n}")
            if rt == 0 and fb == 1: A(f"s_add_u32 s{sHA}, s{sHA}, 8192", f"s_add_u32 s{sHBk}, s{sHBk}, 8192")
            for n, (g, u) in enumerate(prs): A(f"v_pk_mul_f32 {P2(u)}, {P2(u)}, {P2(T[n])}")
            d = prs[0][0]
            for n, (g, u) in enumerate(prs): A(f"v_cvt_pk_bf16_f32 v{d+n}, v{u}, v{u+1}")
            A(f"buffer_store_dwordx4 v[{d}:{d+3}], v{vL16}, {srd(S_WS)}, s{sHA if rt < 2 else sHBk} offen offset:{(rt&1)*1024}{stflag}")

def relayout(A, stflag=""):
    vo, vt, vd, t0 = 128, 140, 160, 100
    E = 60; sN, sK, sLD, sLR, sSO, sB = 76, 77, 78, 79, 80, 81
    A(f"s_lshl_b32 s{sT0}, s{sI}, 2", f"s_add_u32 s{sN}, s{sT0}, s{sI}", f"s_add_u32 s{sN}, s{sN}, s{sPHI}", f"s_sub_u32 s{sN}, s{sN}, 27",
      f"s_mul_i32 s{sB}, s{sW}, 40960", f"s_mul_i32 s{sT0}, s{sW}, 320", f"s_mov_b32 s{E+3}, 0x20000")
    for i in range(10):
        A(f"v_add_u32 v{t0}, {64*i}, v{vLANE}", f"v_mul_u32_u24 v{t0+1}, 3277, v{t0}", f"v_lshrrev_b32 v{t0+1}, 16, v{t0+1}",
          f"v_mul_u32_u24 v{t0+1}, {1280-320}, v{t0+1}", f"v_lshl_add_u32 v{t0+1}, v{t0}, 4, v{t0+1}",
          f"v_subrev_u32 v{t0+1}, {(i%4)*1024}, v{t0+1}", f"v_add_u32 v{vo+i}, s{sT0}, v{t0+1}")
    A(f"v_lshrrev_b32 v{t0}, 2, v{vLANE}", f"v_mul_u32_u24 v{t0}, 320, v{t0}", f"v_and_b32 v{t0+1}, 3, v{vLANE}",
      f"v_lshl_add_u32 v{vt}, v{t0+1}, 4, v{t0}", f"v_lshl_add_u32 v{vt+1}, v{t0+1}, 3, v{t0}")
    def issue():
        A(f"s_cmp_lt_u32 s{sK}, 128", f"s_cselect_b64 s[{E}:{E+1}], s[{S_WO}:{S_WO+1}], s[{S_WD}:{S_WD+1}]", f"s_cselect_b32 s{E+2}, s{S_WO+2}, s{S_WD+2}",
          f"s_and_b32 s{sT0}, s{sK}, 127", f"s_mul_i32 s{sT0}, s{sT0}, 40960",
          f"s_cmp_lt_u32 s{sK}, {NKS}", f"s_cselect_b32 s{E+2}, s{E+2}, 0", f"s_add_u32 s{sT1}, s{sLD}, s{sB}")
        for i in range(10):
            if i % 4 == 0: A(f"s_add_u32 m0, s{sT1}, {i*1024}", "s_nop 0")
            A(f"buffer_load_dwordx4 v{vo+i}, {srd(E)}, s{sT0} offen offset:{(i%4)*1024} lds")
        A(f"s_add_u32 s{sK}, s{sK}, 40", f"s_add_u32 s{sLD}, s{sLD}, 10240", f"s_cmp_eq_u32 s{sLD}, 40960", f"s_cselect_b32 s{sLD}, 0, s{sLD}")
    A(f"s_mov_b32 s{sK}, s{sN}", f"s_mov_b32 s{sLD}, 0", f"s_mov_b32 s{sLR}, 0", f"s_mov_b32 s{sT2}, 0",
      f"s_mul_i32 s{sSO}, s{sW}, {NKS*10240}", f"s_mul_i32 s{sT0}, s{sN}, 10240", f"s_add_u32 s{sSO}, s{sSO}, s{sT0}", f"s_add_u32 s{sSO}, s{sSO}, {W3_OFF}")
    A.label("L_rl_loop")
    issue()
    A(f"s_add_u32 s{sT2}, s{sT2}, 1", f"s_cmp_lt_u32 s{sT2}, 4", "s_cbranch_scc1 L_rl_loop")
    A(f"s_add_u32 s{sT0}, s{sLR}, s{sB}", f"v_add_u32 v{vt+2}, s{sT0}, v{vt}", f"v_add_u32 v{vt+3}, s{sT0}, v{vt+1}", "s_waitcnt vmcnt(30)")
    for mt in range(10):
        hf, T = divmod(mt, 5)
        for s_ in range(2):
            if T < 4: A(f"ds_read_b64_tr_b16 v[{vd+4*mt+2*s_}:{vd+4*mt+2*s_+1}], v{vt+2} offset:{s_*16*320 + hf*160 + (T>>1)*64 + (T&1)*8}")
            else: A(f"ds_read_b64_tr_b16 v[{vd+4*mt+2*s_}:{vd+4*mt+2*s_+1}], v{vt+3} offset:{s_*16*320 + hf*160 + 128}")
    A(f"s_mov_b32 s{sT0}, s{sSO}", "s_waitcnt lgkmcnt(0)")
    for mt in range(10):
        A(f"buffer_store_dwordx4 v[{vd+4*mt}:{vd+4*mt+3}], v{vL16}, {srd(S_WS)}, s{sT0} offen offset:{(mt%4)*1024}{stflag}")
        if mt % 4 == 3: A(f"s_add_u32 s{sT0}, s{sT0}, 4096")
    A(f"s_add_u32 s{sSO}, s{sSO}, {40*10240}", f"s_add_u32 s{sLR}, s{sLR}, 10240", f"s_cmp_eq_u32 s{sLR}, 40960", f"s_cselect_b32 s{sLR}, 0, s{sLR}",
      f"s_add_u32 s{sN}, s{sN}, 40", f"s_cmp_lt_u32 s{sN}, {NKS}", "s_cbranch_scc1 L_rl_loop")
    A("s_waitcnt vmcnt(0)", "s_barrier")

def gen_k2(A, name):
    kernel_head(A, name, [S_WQ, S_WO, S_WG, S_WU, S_WD, S_WS], f"L_{name}_end")
    stamp(A, 4)
    qgu_setup(A)
    A("s_waitcnt lgkmcnt(0)")
    qgu_srds(A)
    A(f"s_cmp_ge_u32 s{sPHI}, 27", "s_cbranch_scc1 L_qonly")
    prologue_dma(A); prologue_reads(A, QGU_CTS)
    stamp(A, 5); fine_begin(A)
    run_gemm(A, "qgu", QGU_CTS, 10, 12, last_hook=lambda sc: fill(sc, q_items()), lastbar=True)
    stamp(A, 6); fine_dump(A, 1)
    attn.attn_setup(A)
    for k, x in attn.first_dma_items(): A(x)
    geglu(A)
    A.label("L_attn")
    stamp(A, 7); fine_begin(A)
    attn.attention(A)
    attn.slow_path(A)
    A.label("L_qonly")
    prologue_dma(A, 3); prologue_reads(A, Q_CTS)
    fine_begin(A)
    run_gemm(A, "qo", Q_CTS, 10, 8, last_hook=lambda sc: fill(sc, q_items()), lastbar=True)
    stamp(A, 10)
    relayout(A)
    attn.attn_setup(A)
    for k, x in attn.first_dma_items(): A(x)
    A("s_branch L_attn")
    A.label("L_attn_done")
    stamp(A, 8); fine_dump(A, 2)
    if STAMPS[0]: A("s_waitcnt vmcnt(0)"); stamp(A, 9)
    A.label(f"L_{name}_end"); A("s_endpgm")
```

```python
from common import *

SLOT = 36864
vAA, vWA = 4, 8
vAB, vWB = 10, 14
vXO, vXO2, vL8 = 15, 16, 17
vACC = 32
vXR = 112
vPT = 128
E3 = 60
sSG, sRB, sCB, sGA, sGW, sGW2, sJA, sJW, sNF, sNT, sCT, sDA, sRSL, sRM, sPB, sFB, sXO = range(72, 89)

def acc(mt, rho): return Reg("v", vACC + (rho * 5 + mt) * 4)
def af(par, rho, ks): return Reg("a", par * 72 + (rho * 2 + ks) * 4)
def wf(par, mt, ks): return Reg("a", par * 72 + 32 + (mt * 2 + ks) * 4)
def reads(par):
    out = [f"ds_read_b128 {wf(par, 0, ks)}, v{vWA} offset:{ks*10240}" for ks in range(2)]
    out += [f"ds_read_b128 {af(par, rho, ks)}, v{vAA+rho} offset:{ks*8192}" for rho in range(4) for ks in range(2)]
    out += [f"ds_read_b128 {wf(par, mt, ks)}, v{vWA} offset:{ks*10240 + mt*1024}" for mt in range(1, 5) for ks in range(2)]
    return out
def dma():
    L = lambda so, n: f"buffer_load_dwordx4 v{vL16}, {srd(E3)}, s{so} offen offset:{n*1024} lds"
    return [([f"s_add_u32 m0, s{sDA}, s{sT0}"], [L(sGA, n) for n in range(4)]),
            ([f"s_add_u32 m0, s{sDA}, s{sT1}"], [L(sGW, n) for n in range(4)]),
            ([f"s_add_u32 m0, m0, 4096", f"s_add_u32 s{sGW2}, s{sGW}, 4096"], [L(sGW2, 0)])]
ADV = [[f"s_add_u32 s{sGA}, s{sGA}, 16384"], [f"s_add_u32 s{sGW}, s{sGW}, 20480"], [f"s_add_u32 s{sCT}, s{sCT}, 1"],
       [f"s_cmp_eq_u32 s{sCT}, s{sNF}", f"s_cselect_b32 s{sGA}, s{sJA}, s{sGA}", f"s_cselect_b32 s{sGW}, s{sJW}, s{sGW}"],
       [f"s_cmp_eq_u32 s{sCT}, s{sNT}", f"s_cselect_b32 s{E3+2}, 0, s{E3+2}"]]
def rot(r): return [[f"s_add_u32 s{r}, s{r}, {SLOT}"], [f"s_cmp_eq_u32 s{r}, {4*SLOT}", f"s_cselect_b32 s{r}, 0, s{r}"]]
def addr_upd(): return [f"v_add_u32 v{vWA}, s{sRSL}, v{vWB}"] + [f"v_add_u32 v{vAA+r}, s{sRSL}, v{vAB+r}" for r in range(4)]

def slab(par):
    mf = [mfma(acc(mt, rho), wf(par, mt, ks), af(par, rho, ks)) for mt in range(5) for rho in range(4) for ks in range(2)]
    sc = Sched(mf)
    sc.s(0, "s_waitcnt vmcnt(18)", "s_barrier")
    dpos = [2, 6, 10, 14, 18, 22, 26, 30, 33]; k = 0
    for pre, ld in dma():
        for j, x in enumerate(pre): sc.s(dpos[k] - len(pre) + j, x)
        for x in ld: sc.m(dpos[k], x); k += 1
    g = 1
    for x in reads(1 - par):
        while sc.M[g]: g += 1
        sc.m(g, x); g += 1
    last_rd = g - 1
    for j, grp in enumerate(rot(sRSL)): sc.s(3 + j, *grp)
    g = last_rd + 1
    for x in addr_upd():
        while sc.M[g]: g += 1
        sc.v(g, x); g += 1
    for j, grp in enumerate(rot(sDA)): sc.s(19 + j, *grp)
    sc.s(15, *ADV[0]); sc.s(16, *ADV[2]); sc.s(34, *ADV[1]); sc.s(35, *ADV[3]); sc.s(36, *ADV[4])
    sc.s(37, f"s_sub_u32 s{sRM}, s{sRM}, 1"); sc.s(38, "s_waitcnt lgkmcnt(0)", f"s_cmp_eq_u32 s{sRM}, 0")
    return sc

def k3_setup(A):
    t = 20
    A(f"s_lshr_b32 s{sSG}, s{sH}, 3", f"s_and_b32 s{sCB}, s{sH}, 3", f"s_sub_u32 s{sRB}, 15, s{sI}",
      f"s_bitcmp1_b32 s{sH}, 2", f"s_cselect_b32 s{sRB}, s{sI}, s{sRB}",
      f"s_cmp_eq_u32 s{sSG}, 3", f"s_cselect_b32 s{sNF}, 6, 7", f"s_add_u32 s{sNT}, s{sNF}, 16", f"s_mov_b32 s{sRM}, s{sNT}", f"s_mov_b32 s{sCT}, 0",
      f"s_mul_i32 s{sT0}, s{sRB}, {NKS*8192}", f"s_lshl_b32 s{sT1}, s{sW}, 12", f"s_add_u32 s{sT0}, s{sT0}, s{sT1}", f"s_add_u32 s{sT0}, s{sT0}, {A3_OFF}",
      f"s_lshl_b32 s{sJA}, s{sSG}, 18", f"s_add_u32 s{sJA}, s{sJA}, s{sT0}",
      f"s_mul_i32 s{sGA}, s{sSG}, {14*8192}", f"s_add_u32 s{sGA}, s{sGA}, s{sT0}", f"s_add_u32 s{sGA}, s{sGA}, {128*8192}",
      f"s_mul_i32 s{sT0}, s{sCB}, {NKS*10240}", f"s_mul_i32 s{sT1}, s{sW}, 5120", f"s_add_u32 s{sT0}, s{sT0}, s{sT1}", f"s_add_u32 s{sT0}, s{sT0}, {W3_OFF}",
      f"s_mul_i32 s{sJW}, s{sSG}, {32*10240}", f"s_add_u32 s{sJW}, s{sJW}, s{sT0}",
      f"s_mul_i32 s{sGW}, s{sSG}, {14*10240}", f"s_add_u32 s{sGW}, s{sGW}, s{sT0}", f"s_add_u32 s{sGW}, s{sGW}, {128*10240}",
      f"s_mov_b32 s{sDA}, 0", f"s_mov_b32 s{sRSL}, 0")
    A(f"s_lshr_b32 s{sT2}, s{sW}, 1", f"s_lshl_b32 s{sT2}, s{sT2}, 2")
    for rho in range(4):
        A(f"s_add_u32 s{sT0}, s{sSG}, {rho}", f"s_and_b32 s{sT0}, s{sT0}, 3", f"s_add_u32 s{sT0}, s{sT0}, s{sT2}", f"s_lshl_b32 s{sT0}, s{sT0}, 10",
          f"v_add_u32 v{vAB+rho}, s{sT0}, v{vL16}")
    A(f"s_and_b32 s{sT3}, s{sW}, 1", f"s_mul_i32 s{sT0}, s{sT3}, 5120", f"s_add_u32 s{sT0}, s{sT0}, 16384", f"v_add_u32 v{vWB}, s{sT0}, v{vL16}")
    A(f"s_lshl_b32 s{sT0}, s{sRB}, 3", f"s_add_u32 s{sT0}, s{sT0}, s{sT2}", f"s_add_u32 s{sT0}, s{sT0}, s{sSG}", f"s_mul_i32 s{sXO}, s{sT0}, {16*1280}",
      f"s_mul_i32 s{sT0}, s{sCB}, 320", f"s_add_u32 s{sXO}, s{sXO}, s{sT0}", f"s_mul_i32 s{sT0}, s{sT3}, 160", f"s_add_u32 s{sXO}, s{sXO}, s{sT0}",
      f"v_and_b32 v{t}, 15, v{vLANE}", f"v_mul_u32_u24 v{t}, 1280, v{t}", f"v_lshrrev_b32 v{t+1}, 4, v{vLANE}",
      f"v_lshl_add_u32 v{vXO}, v{t+1}, 4, v{t}", f"v_lshl_add_u32 v{vXO2}, v{t+1}, 3, v{t}", f"v_lshlrev_b32 v{vL8}, 3, v{vLANE}")
    A(f"s_lshl_b32 s{sT0}, s{sRB}, 2", f"s_add_u32 s{sT0}, s{sT0}, s{sCB}",
      f"s_mul_i32 s{sPB}, s{sT0}, {12*10240}", f"s_mul_i32 s{sT1}, s{sW}, 2560", f"s_add_u32 s{sPB}, s{sPB}, s{sT1}", f"s_add_u32 s{sPB}, s{sPB}, {PART_OFF}",
      f"s_lshl_b32 s{sFB}, s{sT0}, 11", f"s_lshl_b32 s{sT1}, s{sW}, 7", f"s_add_u32 s{sFB}, s{sFB}, s{sT1}", f"s_add_u32 s{sFB}, s{sFB}, {FLAG_OFF}")
    A(f"s_lshl_b32 s{sT0}, s{sW}, 12", f"s_mul_i32 s{sT1}, s{sW}, 5120", f"s_add_u32 s{sT1}, s{sT1}, 16384")

def issue_slab(A):
    for pre, ld in dma():
        A.ext(pre)
        if len(pre) == 1: A("s_nop 0")
        A.ext(ld)
    for grp in ADV + rot(sDA): A.ext(grp)

def unpack_add(A, src, n0=0):
    t = 20
    for k in range(10):
        d = vACC + 2 * k; tt = t + 2 * (k % 4)
        A(f"v_lshlrev_b32 v{tt}, 16, v{src+k}", f"v_and_b32 v{tt+1}, 0xffff0000, v{src+k}", f"v_pk_add_f32 v[{d}:{d+1}], v[{d}:{d+1}], v[{tt}:{tt+1}]")

def k3_main(A):
    A.ext(addr_upd())
    for r in range(vACC, vACC + 80, 2): A(f"v_mov_b64 v[{r}:{r+1}], 0")
    A("s_waitcnt vmcnt(27)", "s_barrier")
    A.ext(reads(0))
    for grp in rot(sRSL): A.ext(grp)
    A.ext(addr_upd()); A("s_waitcnt lgkmcnt(0)")
    s0, s1 = slab(0), slab(1)
    s0.s(39, "s_cbranch_scc1 L_k3_done"); s1.s(39, "s_cbranch_scc0 L_k3_loop")
    stamp(A, 13)
    A(".p2align 3"); A.label("L_k3_loop"); s0.emit(A); s1.emit(A); A.label("L_k3_done")
    stamp(A, 14)
    A("s_nop 7")
    for rho in (1, 2, 3):
        b = acc(0, rho).b
        A(f"s_add_u32 s{sT2}, s{sSG}, {rho}", f"s_and_b32 s{sT2}, s{sT2}, 3", f"s_mul_i32 s{sT2}, s{sT2}, 30720",
          f"s_add_u32 s{sT2}, s{sT2}, s{sPB}", f"s_add_u32 s{sT2}, s{sT2}, {(rho-1)*10240}")
        for k in range(10): A(f"v_cvt_pk_bf16_f32 v{b+k}, v{b+2*k}, v{b+2*k+1}")
        A(f"buffer_store_dwordx4 v[{b}:{b+3}], v{vL16}, {srd(S_WS)}, s{sT2} offen sc1",
          f"buffer_store_dwordx4 v[{b+4}:{b+7}], v{vL16}, {srd(S_WS)}, s{sT2} offen offset:1024 sc1",
          f"buffer_store_dwordx2 v[{b+8}:{b+9}], v{vL8}, {srd(S_WS)}, s{sT2} offen offset:2048 sc1")
    A(f"v_add_u32 v20, s{sSG}, v{vLANE}", "v_add_u32 v20, 1, v20", "v_and_b32 v20, 3, v20", "v_lshlrev_b32 v20, 9, v20",
      f"v_lshl_add_u32 v18, v{vLANE}, 2, v20", f"v_cmp_gt_u32 vcc, 3, v{vLANE}", "v_mov_b32 v20, 0x7ffffff0", "v_mov_b32 v19, 1",
      "v_cndmask_b32 v18, v20, v18, vcc")
    unpack_add(A, vXR)
    A("s_waitcnt vmcnt(0)", f"buffer_store_dword v19, v18, {srd(S_WS)}, s{sFB} offen sc1")
    stamp(A, 15)
    A(f"s_lshl_b32 s{sT2}, s{sSG}, 9", f"s_add_u32 s{sFB}, s{sFB}, s{sT2}", f"s_mul_i32 s{sT2}, s{sSG}, 30720", f"s_add_u32 s{sPB}, s{sPB}, s{sT2}",
      f"s_mov_b32 s{sCT}, 0")
    A.label("L_k3_poll")
    A(f"buffer_load_dwordx3 v[20:22], off, {srd(S_WS)}, s{sFB} sc1", f"s_add_u32 s{sCT}, s{sCT}, 1", "s_waitcnt vmcnt(0)",
      "v_and_b32 v20, v20, v21", "v_and_b32 v20, v20, v22", f"s_cmp_ge_u32 s{sCT}, 0x40000", f"v_readfirstlane_b32 s{sT2}, v20",
      "s_cbranch_scc1 L_k3_go", f"s_cmp_lg_u32 s{sT2}, 1", "s_cbranch_scc1 L_k3_poll")
    A.label("L_k3_go")
    stamp(A, 16)
    for j in range(3):
        b = vPT + 12 * j
        A(f"buffer_load_dwordx4 v[{b}:{b+3}], v{vL16}, {srd(S_WS)}, s{sPB} offen sc1",
          f"buffer_load_dwordx4 v[{b+4}:{b+7}], v{vL16}, {srd(S_WS)}, s{sPB} offen offset:1024 sc1",
          f"buffer_load_dwordx2 v[{b+8}:{b+9}], v{vL8}, {srd(S_WS)}, s{sPB} offen offset:2048 sc1")
        if j < 2: A(f"s_add_u32 s{sPB}, s{sPB}, 10240")
    for j in range(3):
        A(f"s_waitcnt vmcnt({6-3*j})"); unpack_add(A, vPT + 12 * j)
    b = vACC
    for k in range(10): A(f"v_cvt_pk_bf16_f32 v{b+k}, v{b+2*k}, v{b+2*k+1}")
    A(f"buffer_store_dwordx4 v[{b}:{b+3}], v{vXO}, {srd(S_OUT)}, s{sXO} offen",
      f"buffer_store_dwordx4 v[{b+4}:{b+7}], v{vXO}, {srd(S_OUT)}, s{sXO} offen offset:64",
      f"buffer_store_dwordx2 v[{b+8}:{b+9}], v{vXO2}, {srd(S_OUT)}, s{sXO} offen offset:128")

def x_loads(A):
    A(f"buffer_load_dwordx4 v[{vXR}:{vXR+3}], v{vXO}, {srd(S_X)}, s{sXO} offen",
      f"buffer_load_dwordx4 v[{vXR+4}:{vXR+7}], v{vXO}, {srd(S_X)}, s{sXO} offen offset:64",
      f"buffer_load_dwordx2 v[{vXR+8}:{vXR+9}], v{vXO2}, {srd(S_X)}, s{sXO} offen offset:128")

def gen_k3(A, name):
    kernel_head(A, name, [S_X, S_OUT, S_WS], f"L_{name}_end")
    stamp(A, 12)
    k3_setup(A)
    A("s_waitcnt lgkmcnt(0)", f"s_mov_b64 s[{E3}:{E3+1}], s[{S_WS}:{S_WS+1}]", f"s_mov_b32 s{E3+2}, {WS_BYTES}", f"s_mov_b32 s{E3+3}, 0x20000")
    x_loads(A)
    for _ in range(4): issue_slab(A)
    k3_main(A)
    stamp(A, 17)
    if STAMPS[0]: A("s_waitcnt vmcnt(0)"); stamp(A, 18)
    A.label(f"L_{name}_end"); A("s_endpgm")
```

```python
from build import *
def empty(A, name):
    A(".p2align 8"); A(f".globl {name}"); A(f".type {name},@function"); A.label(name); A("s_endpgm")
K = [("kv_kernel", k1.gen_k1, 163840), ("attn_kernel", k2.gen_k2, 163840), ("out_kernel", k3.gen_k3, 147456)]
build(K, "va.s")
build(K + [("e_kernel", empty, 0)], "vb.s")
build([("e_kernel", empty, 0)] + K, "vc.s")
build(K + [("e_kernel", empty, 163840)], "vd.s")
```
